```python
import torch

def _softmax(x, axis=-1):
    return torch.softmax(x, dim=axis)

def _gelu(x):
    return torch.nn.functional.gelu(x, approximate='tanh')

def _silu(x):
    return torch.nn.functional.silu(x)

def _sigmoid(x):
    return torch.sigmoid(x)

def _layernorm(x, axis=-1, eps=1e-05):
    m = x.mean(dim=axis, keepdim=True)
    v = x.var(dim=axis, keepdim=True, unbiased=False)
    return (x - m) / torch.sqrt(v + eps)

def _scatter_add(tgt, idx, src, axis=0):
    return tgt.clone().index_add_(axis, idx, src)

def _segment_sum(src, seg, n):
    out = torch.zeros((n,) + src.shape[1:], dtype=src.dtype)
    return out.index_add_(0, seg, src)

def _pad(x, pw):
    flat = tuple((v for pair in reversed(pw) for v in pair))
    return torch.nn.functional.pad(x, flat)
kernel_name = 'adaLN_cond__ssm_conv_s4d__geglu_ffn__prompt'

def setup_inputs():

    _w = lambda a: (lambda t: t.to(torch.bfloat16) if t.is_floating_point() else t)(torch.as_tensor(a))

    def _A_setup():
        Bsz, L, D, N = (1, 2048, 640, 128)
        return {'u': _w((lambda *s: torch.randn(*s, dtype=torch.bfloat16) * 0.05)(Bsz, L, D)), 'log_A_real': _w((lambda *s: torch.randn(*s, dtype=torch.bfloat16) * 3.2)(D, N) * 0.5), 'A_imag': _w((lambda *s: torch.randn(*s, dtype=torch.bfloat16) * 0.1)(D, N) * 3.14), 'C_real': _w((lambda *s: torch.randn(*s, dtype=torch.bfloat16) * 0.4)(D, N) / N ** 0.5), 'C_imag': _w((lambda *s: torch.randn(*s, dtype=torch.bfloat16) * 0.4)(D, N) / N ** 0.5), 'log_dt': _w((lambda *s: torch.randn(*s, dtype=torch.bfloat16) * 0.1)(D) * 0.5 - 4.0), 'D_skip': _w((lambda *s: torch.randn(*s, dtype=torch.bfloat16) * 0.1)(D))}
    _A_in = _A_setup()

    def _B_setup():
        B, S, D, F = (1, 2048, 640, 1728)
        return {'x': _w((lambda *s: torch.randn(*s, dtype=torch.bfloat16) * 0.05)(B, S, D)), 'w_gate': _w((lambda *s: torch.randn(*s, dtype=torch.bfloat16) * 0.05)(D, F)), 'w_up': _w((lambda *s: torch.randn(*s, dtype=torch.bfloat16) * 0.05)(D, F)), 'w_down': _w((lambda *s: torch.randn(*s, dtype=torch.bfloat16) * 0.05)(F, D))}
    _B_in = _B_setup()
    return {'A_u': _A_in['u'], 'A_log_A_real': _A_in['log_A_real'], 'A_A_imag': _A_in['A_imag'], 'A_C_real': _A_in['C_real'], 'A_C_imag': _A_in['C_imag'], 'A_log_dt': _A_in['log_dt'], 'A_D_skip': _A_in['D_skip'], 'B_x': _B_in['x'], 'B_w_gate': _B_in['w_gate'], 'B_w_up': _B_in['w_up'], 'B_w_down': _B_in['w_down'], 'c': _w((lambda *s: torch.randn(*s, dtype=torch.bfloat16) * 0.1)(1, 640) * 8.0), 'w_mod': _w((lambda *s: torch.randn(*s, dtype=torch.bfloat16) * 0.1)(640, 6 * 640) * 640 ** (-0.5) * 8.0)}

def reference(A_u, A_log_A_real, A_A_imag, A_C_real, A_C_imag, A_log_dt, A_D_skip, B_x, B_w_gate, B_w_up, B_w_down, c, w_mod):

    def _A_ref(u, log_A_real, A_imag, C_real, C_imag, log_dt, D_skip):
        L = u.shape[1]
        dt = torch.exp(log_dt)
        A = -torch.exp(log_A_real) + 1j * A_imag
        C = (C_real + 1j * C_imag) * dt[:, None]
        pos = (lambda x, dt: x.to(dt))(torch.arange(L), log_dt.dtype)
        P = torch.exp((A * dt[:, None])[:, :, None] * pos[None, None, :])
        K = 2.0 * torch.einsum('dn,dnl->dl', C, P).real
        L2 = 2 * L
        u_t = (lambda x, *d: x.permute(*d))(u, 0, 2, 1)
        Kf = (lambda x, *a, **k: torch.fft.rfft(x.float(), *a, **k))(K, L2)
        Uf = (lambda x, *a, **k: torch.fft.rfft(x.float(), *a, **k))(u_t, L2)
        y = (lambda x, *a, **k: torch.fft.irfft(x, *a, **k).to(torch.bfloat16))(Uf * Kf[None, :, :], L2)[:, :, :L]
        y = (lambda x, *d: x.permute(*d))(y, 0, 2, 1)
        return y + u * D_skip[None, None, :]

    def _B_ref(x, w_gate, w_up, w_down):
        return _gelu(x @ w_gate) * (x @ w_up) @ w_down
    x = A_u
    mod = (_silu(c) @ w_mod).reshape(c.shape[0], 6, 1, -1)
    sa, ca, ga, sb, cb, gb = (mod[:, 0].clone(), mod[:, 1].clone(), mod[:, 2].clone(), mod[:, 3].clone(), mod[:, 4].clone(), mod[:, 5].clone())
    h = _layernorm(x, axis=-1) * (1 + ca) + sa
    x = x + ga * _A_ref(h, A_log_A_real, A_A_imag, A_C_real, A_C_imag, A_log_dt, A_D_skip)
    h = _layernorm(x, axis=-1) * (1 + cb) + sb
    x = x + gb * _B_ref(h, B_w_gate, B_w_up, B_w_down)
    return x
```

```python
import re
import sys

sys.setrecursionlimit(100000)


def vr(i, n=1):
    return f"v{i}" if n == 1 else f"v[{i}:{i+n-1}]"


def ar(i, n=1):
    return f"a{i}" if n == 1 else f"a[{i}:{i+n-1}]"


def sr(i, n=1):
    return f"s{i}" if n == 1 else f"s[{i}:{i+n-1}]"


_REG = re.compile(r"^(-?)(?:abs\()?\|?([vas])(?:(\d+)|\[(\d+):(\d+)\])\|?\)?$")
TRANS = ("v_exp_", "v_log_", "v_rcp_", "v_rsq_", "v_sqrt_", "v_sin_", "v_cos_")


def regs_of(tok):
    tok = tok.strip()
    if tok in ("vcc",):
        return {("s", "vcc_lo"), ("s", "vcc_hi")}
    if tok in ("vcc_lo", "vcc_hi", "m0", "exec_lo", "exec_hi"):
        return {("s", tok)}
    if tok == "exec":
        return {("s", "exec_lo"), ("s", "exec_hi")}
    m = _REG.match(tok)
    if not m:
        return set()
    k = m.group(2)
    if m.group(3) is not None:
        return {(k, int(m.group(3)))}
    return {(k, i) for i in range(int(m.group(4)), int(m.group(5)) + 1)}


class Ins:
    def __init__(self, text):
        self.text = text
        t = text.split(";")[0].strip()
        self.label = None
        self.op = None
        self.kind = None
        self.dst = set()
        self.src = set()
        self.ops = []
        self.mods = ""
        if not t or t.startswith("."):
            self.kind = "dir"
            return
        if t.endswith(":"):
            self.label = t[:-1]
            self.kind = "label"
            return
        p = t.split(None, 1)
        self.op = op = p[0]
        rest = p[1] if len(p) > 1 else ""
        ops, cur, depth = [], "", 0
        for ch in rest:
            if ch in "[(":
                depth += 1
            if ch in "])":
                depth -= 1
            if ch == "," and depth == 0:
                ops.append(cur.strip())
                cur = ""
            else:
                cur += ch
        if cur.strip():
            ops.append(cur.strip())
        if ops:
            last = ops[-1].split(None, 1)
            if len(last) > 1 and not op.startswith("s_waitcnt"):
                ops[-1] = last[0]
                self.mods = last[1]
        self.ops = ops
        R = [regs_of(o) for o in ops]
        if op.startswith("v_mfma"):
            self.kind = "mfma"
            self.dst = R[0]
            self.srcA, self.srcB, self.srcC = R[1], R[2], R[3]
            self.src = R[1] | R[2] | R[3]
            if "32x32x16" in op or "32x32x8" in op:
                self.passes = 8
            elif "16x16x32" in op or "16x16x16" in op:
                self.passes = 4
            elif "32x32x2_f32" in op or "32x32x2f32" in op:
                self.passes = 16
            elif "16x16x4_f32" in op or "16x16x4f32" in op:
                self.passes = 8
            else:
                raise ValueError("unknown mfma " + op)
            self.sgemm = op.endswith("_f32") and ("x2_f32" in op or "x4_f32" in op)
        elif op.startswith("v_"):
            self.kind = "valu"
            self.trans = op.startswith(TRANS)
            if op == "v_nop":
                return
            if op.startswith("v_cmpx"):
                self.dst = R[0] | regs_of("exec")
                self.src = set().union(*R[1:])
            elif op.startswith(("v_add_co", "v_sub_co", "v_subrev_co", "v_addc_co", "v_subb_co", "v_div_scale", "v_mad_u64_u32")):
                self.dst = R[0] | R[1]
                self.src = set().union(*R[2:])
            elif op.startswith(("v_permlane16_swap", "v_permlane32_swap", "v_swap")):
                self.dst = R[0] | R[1]
                self.src = R[0] | R[1]
            else:
                self.dst = R[0]
                self.src = set().union(*R[1:]) if len(R) > 1 else set()
                if op.startswith(("v_fmac", "v_mac", "v_dot2c", "v_dot4c", "v_pk_fmac", "v_writelane")):
                    self.src |= R[0]
                if "dst_unused:UNUSED_PRESERVE" in self.mods or ("_dpp" in op) or ("row_" in self.mods) or ("quad_perm" in self.mods):
                    self.src |= R[0]
                if op.startswith("v_div_fmas"):
                    self.src |= regs_of("vcc")
            self.dpp = ("_dpp" in op) or ("row_" in self.mods) or ("quad_perm" in self.mods) or ("wave_" in self.mods)
            self.sdwa_dst = ("dst_sel:" in self.mods and "dst_sel:DWORD" not in self.mods) or (
                "op_sel:" in self.mods and not op.startswith("v_pk_") and not op.startswith("v_dot"))
        elif op.startswith("ds_"):
            self.kind = "ds"
            if op.startswith(("ds_read", "ds_bpermute", "ds_permute", "ds_swizzle")) or "_rtn" in op:
                self.dst = R[0]
                self.src = set().union(*R[1:]) if len(R) > 1 else set()
            else:
                self.src = set().union(*R)
        elif op.startswith(("buffer_", "global_", "flat_")):
            self.kind = "vmem"
            self.ldsdma = (" lds" in " " + self.mods) or ("_load_lds_" in op)
            self.store = "_store" in op
            atomic = "_atomic" in op
            if op.startswith(("buffer_wbl2", "buffer_inv")):
                self.store = True
                self.wide = False
                return
            if self.ldsdma:
                self.src = set().union(*R) | {("s", "m0")}
            elif self.store:
                self.src = set().union(*R)
                self.data = R[0] if op.startswith("buffer_") else R[1]
            elif atomic:
                ret = "sc0" in self.mods.split()
                if op.startswith("buffer_"):
                    self.src = set().union(*R)
                    if ret:
                        self.dst = R[0]
                else:
                    if ret:
                        self.dst = R[0]
                        self.src = set().union(*R[1:])
                    else:
                        self.src = set().union(*R)
            else:
                self.dst = R[0]
                self.src = set().union(*R[1:])
                if "_d16" in op:
                    self.src |= R[0]
            self.wide = self.store and op.endswith(("x3", "x4"))
        elif op.startswith(("s_load", "s_buffer_load", "s_memtime", "s_memrealtime", "s_atomic")):
            self.kind = "smem"
            self.dst = R[0]
            self.src = set().union(*R[1:]) if len(R) > 1 else set()
            if op.startswith("s_atomic"):
                self.src |= R[0]
        elif op.startswith("s_"):
            self.kind = "salu"
            if op.startswith(("s_waitcnt", "s_nop", "s_barrier", "s_branch", "s_cbranch", "s_endpgm", "s_setprio", "s_sleep", "s_sendmsg")):
                return
            if op.startswith(("s_cmp", "s_bitcmp")):
                self.src = set().union(*R)
            elif op.startswith("s_setreg"):
                self.src = set().union(*R)
            else:
                self.dst = R[0]
                self.src = set().union(*R[1:]) if len(R) > 1 else set()
                if "saveexec" in op:
                    self.dst |= regs_of("exec")
                    self.src |= regs_of("exec")
                if op.startswith(("s_addk", "s_mulk", "s_cmov")):
                    self.src |= R[0]
        else:
            raise ValueError("unknown instruction: " + text)

    def states(self):
        if self.kind in ("dir", "label"):
            return 0
        if self.op == "s_nop":
            return int(self.ops[0], 0) + 1
        return 1

    def is_uncond_end(self):
        return self.op in ("s_branch", "s_endpgm")

    def target(self):
        if self.op and (self.op == "s_branch" or self.op.startswith("s_cbranch")):
            return self.ops[0]
        return None


def vpart(s):
    return {r for r in s if r[0] in "va"}


def spart(s):
    return {r for r in s if r[0] == "s"}


def need(p, c):
    n = 0
    if p.kind == "valu":
        pv, ps = vpart(p.dst), spart(p.dst)
        if c.kind == "mfma" and pv & c.src:
            n = max(n, 2)
        if c.kind == "mfma" and ("s", "exec_lo") in ps:
            n = max(n, 4)
        if c.kind == "valu":
            if p.trans and not c.trans and pv & c.src:
                n = max(n, 1)
            if p.trans and c.trans and pv & c.src:
                n = max(n, 1)
            if getattr(p, "sdwa_dst", False) and pv & (c.src | c.dst):
                n = max(n, 1)
            if getattr(c, "dpp", False) and pv & c.src:
                n = max(n, 2)
            if getattr(c, "dpp", False) and ("s", "exec_lo") in ps:
                n = max(n, 5)
            if c.op.startswith(("v_readlane", "v_readfirstlane")) and pv & c.src:
                n = max(n, 1)
            if c.op.startswith("v_permlane") and pv & c.src:
                n = max(n, 2)
            if ps & c.src:
                n = max(n, 4 if c.op.startswith(("v_readlane", "v_writelane", "v_div_fmas")) else 2)
            if ("s", "exec_lo") in ps and c.op.startswith(("v_readlane", "v_readfirstlane", "v_writelane", "v_permlane")):
                n = max(n, 4)
        if c.kind == "vmem" and ps & c.src:
            n = max(n, 5)
        if c.kind in ("salu", "smem") and ps & c.src:
            n = max(n, 1)
        if p.op.startswith("v_dot") and c.kind in ("valu", "mfma", "vmem", "ds") and pv & (c.src | c.dst):
            if not (c.op == p.op and not (pv & set().union(*[regs_of(o) for o in c.ops[1:3]]))):
                n = max(n, 3)
    elif p.kind == "salu":
        if ("s", "m0") in p.dst and ((c.kind == "vmem" and getattr(c, "ldsdma", False)) or (c.kind == "ds" and "addtid" in c.op) or (c.op or "").startswith("s_movrel")):
            n = max(n, 1)
    elif p.kind == "vmem":
        if getattr(p, "wide", False) and c.kind in ("valu", "mfma", "vmem", "ds") and p.data & c.dst:
            n = max(n, 2)
    elif p.kind == "mfma":
        P = p.passes
        idx = {2: 0, 4: 1, 8: 2, 16: 3}[P]
        if c.kind == "mfma":
            if p.dst & (c.srcA | c.srcB):
                n = max(n, ([4, 6, 10, 18] if p.sgemm else [5, 8, 12, 20])[idx])
            if p.dst & c.srcC:
                if p.dst == c.srcC and c.passes == P and p.sgemm == c.sgemm:
                    n = max(n, [2, 0, 0, 0][idx])
                else:
                    n = max(n, [4, 6, 10, 18][idx])
            elif p.dst & c.dst:
                n = max(n, [5, 8, 12, 20][idx])
        elif c.kind in ("valu", "vmem", "ds"):
            if p.dst & (c.src | c.dst):
                n = max(n, ([4, 6, 10, 18] if p.sgemm else [5, 8, 12, 20])[idx])
            if c.kind == "valu" and p.srcC & c.dst and not p.sgemm:
                n = max(n, [1, 3, 7, 15][idx])
    return n


def pad_hazards(lines, verbose=False):
    ins = [Ins(l) for l in lines]
    MAXD = 21
    npad = 0
    i = 0

    def preds_of_label(name):
        return [j for j, x in enumerate(ins) if x.target() == name]

    while i < len(ins):
        c = ins[i]
        if c.kind in ("dir", "label") or c.op in ("s_nop",):
            i += 1
            continue
        deficit = 0
        why = None
        seen = set()
        stack = [(i - 1, 0)]
        while stack:
            j, d = stack.pop()
            while j >= 0 and d < MAXD:
                if (j, d) in seen:
                    break
                seen.add((j, d))
                p = ins[j]
                if p.kind == "label":
                    for q in preds_of_label(p.label):
                        stack.append((q, d))
                    k = j - 1
                    while k >= 0 and ins[k].kind == "dir":
                        k -= 1
                    if k >= 0 and ins[k].kind != "label" and ins[k].is_uncond_end():
                        break
                    j -= 1
                    continue
                if p.kind == "dir":
                    j -= 1
                    continue
                if p.op == "s_endpgm":
                    break
                r = need(p, c)
                if r - d > deficit:
                    deficit = r - d
                    why = p.text
                d += p.states()
                j -= 1
        if deficit > 0:
            if verbose:
                print(f"pad {deficit}: {why.strip()}  ->  {c.text.strip()}")
            k = deficit
            while k > 0:
                m = min(k, 16)
                ins.insert(i, Ins(f"    s_nop {m-1}"))
                i += 1
                k -= m
            npad += deficit
        i += 1
    return [x.text for x in ins], npad


def check_waits(lines, entry_labels):
    ins = [Ins(l) for l in lines]
    lab = {x.label: i for i, x in enumerate(ins) if x.kind == "label"}
    errs = {}
    for e in entry_labels:
        seen = set()
        stack = [(lab[e], (), ())]
        steps = 0
        while stack:
            pc, vm, lg = stack.pop()
            while pc < len(ins):
                x = ins[pc]
                if x.kind == "label":
                    key = (pc, vm, lg)
                    if key in seen:
                        break
                    seen.add(key)
                    pc += 1
                    continue
                if x.kind == "dir":
                    pc += 1
                    continue
                steps += 1
                if steps > 20_000_000:
                    raise RuntimeError("check_waits: too many steps")
                if x.op == "s_endpgm":
                    break
                if x.op.startswith("s_waitcnt"):
                    t = x.text.split(";")[0]
                    m = re.search(r"vmcnt\((\d+)\)", t)
                    if m:
                        n = int(m.group(1))
                        vm = vm[len(vm) - n:] if n < len(vm) else vm
                        if n == 0:
                            vm = ()
                    m = re.search(r"lgkmcnt\((\d+)\)", t)
                    if m:
                        n = int(m.group(1))
                        if n == 0:
                            lg = ()
                        elif not any(k == "smem" for k, _ in lg):
                            lg = lg[len(lg) - n:] if n < len(lg) else lg
                    pc += 1
                    continue
                used = x.src | x.dst
                for regs in vm:
                    if regs & used:
                        if x.kind == "vmem" and not (regs & x.src):
                            continue
                        errs.setdefault(pc, f"vmcnt: {x.text.strip()} touches {sorted(regs & used)[:4]}")
                for k, regs in lg:
                    if regs & used:
                        if x.kind == "ds" and k == "ds" and not (regs & x.src):
                            continue
                        errs.setdefault(pc, f"lgkmcnt: {x.text.strip()} touches {sorted(regs & used)[:4]}")
                if x.kind == "vmem" and not x.op.startswith(("buffer_wbl2", "buffer_inv")):
                    vm = vm + (frozenset(x.dst),)
                    if len(vm) > 63:
                        vm = vm[-63:] if not any(vm[:-63]) else vm
                        if len(vm) > 63:
                            errs.setdefault(pc, "more than 63 vmem ops outstanding with pending dst")
                            vm = vm[-63:]
                elif x.kind in ("ds", "smem"):
                    lg = lg + ((x.kind, frozenset(x.dst)),)
                    if len(lg) > 40:
                        lg = lg[-40:]
                t = x.target()
                if t is not None:
                    if x.op == "s_branch":
                        pc = lab[t]
                        continue
                    stack.append((lab[t], vm, lg))
                pc += 1
    return [(pc, m) for pc, m in sorted(errs.items())]


class Prog:
    def __init__(self):
        self.lines = []
        self.kernels = []
        self._lab = 0

    def __call__(self, s):
        for l in s.split("\n"):
            l = l.strip()
            if not l:
                continue
            self.lines.append(l if l.endswith(":") or l.startswith(".") else "    " + l)

    def label(self, stem="L"):
        self._lab += 1
        return f"{stem}_{self._lab}"

    def begin(self, name):
        self(f".globl {name}\n.p2align 8\n.type {name},@function\n{name}:")
        self._start = len(self.lines)

    def end(self, name, grid, block, lds, launch=True):
        mv = ma = ms = -1
        for l in self.lines[self._start:]:
            x = Ins(l)
            for k, r in x.src | x.dst:
                if isinstance(r, int):
                    if k == "v":
                        mv = max(mv, r)
                    elif k == "a":
                        ma = max(ma, r)
                    else:
                        ms = max(ms, r)
        accum = (mv + 1 + 3) // 4 * 4
        accum = max(accum, 4)
        nv = accum + ma + 1 if ma >= 0 else mv + 1
        assert accum <= 256 and nv <= 512, (name, accum, nv)
        assert ms <= 101
        self.kernels.append(dict(name=name, grid=grid, block=block, lds=lds, nv=max(nv, 1), accum=accum, ns=max(ms + 1, 8), launch=launch))

    def text(self, header, launches=None, verbose=False):
        lines, npad = pad_hazards(self.lines, verbose)
        errs = check_waits(lines, [k["name"] for k in self.kernels])
        for pc, m in errs:
            print("WAIT ERROR line", pc, m)
        assert not errs
        out = [header.rstrip()]
        byname = {k["name"]: k for k in self.kernels}
        seq = launches or [k["name"] for k in self.kernels if k["launch"]]
        if len(seq) == 1 and len(self.kernels) == 1:
            k = byname[seq[0]]
            out.append(f"; @launch grid=({k['grid']},1,1) block=({k['block']},1,1) lds={k['lds']}")
        else:
            for n in seq:
                k = byname[n]
                out.append(f"; @launch kernel={n} grid=({k['grid']},1,1) block=({k['block']},1,1) lds={k['lds']}")
        out.append('.amdgcn_target "amdgcn-amd-amdhsa--gfx950"\n.text')
        out += lines
        out.append('.section .rodata,"a"')
        for k in self.kernels:
            out.append(f""".p2align 6
.amdhsa_kernel {k['name']}
  .amdhsa_next_free_vgpr {k['nv']}
  .amdhsa_next_free_sgpr {k['ns']}
  .amdhsa_accum_offset {k['accum']}
  .amdhsa_group_segment_fixed_size 0
  .amdhsa_kernarg_size 128
  .amdhsa_user_sgpr_count 2
  .amdhsa_user_sgpr_kernarg_segment_ptr 1
  .amdhsa_system_sgpr_workgroup_id_x 1
  .amdhsa_float_denorm_mode_32 3
  .amdhsa_float_denorm_mode_16_64 3
.end_amdhsa_kernel""")
        info = ", ".join(f"{k['name']}: v{k['nv']} acc{k['accum']} s{k['ns']}" for k in self.kernels)
        print(f"[asmlib] {len(lines)} lines, {npad} pad states; {info}")
        return "\n".join(out) + "\n"
```

```python
import sys
from asmlib import *
NAME = 'adaLN_cond__ssm_conv_s4d__geglu_ffn__prompt'
HDR = ''.join(l for l in open(f'cdna_kernels/{NAME}.s.ref') if l.startswith(';') and '@launch' not in l and 'Override' not in l and 'grid=ceil' not in l)
ARG = dict(u=0, lar=8, aim=16, cr=24, ci=32, ldt=40, dsk=48, bx=56, wg=64, wu=72, wd=80, c=88, wm=96, out=104, dbg=112, ws=120)
SIZE = dict(u=2621440, lar=163840, aim=163840, cr=163840, ci=163840, ldt=1280, dsk=1280, wg=2211840, wu=2211840, wd=2211840, c=1280, wm=4915200, out=2621440, dbg=256)
WS = dict(mod=(0, 15360), h=(1<<20, 2621440), K=(4<<20, 2048*640*4), x1=(10<<20, 2621440), h2=(13<<20, 2621440), z=(16<<20, 2048*1728*2))
P = Prog()
def srds(lst):
    for n, s in lst:
        P(f's_load_dwordx2 {sr(s,2)}, s[0:1], {ARG[n] if n in ARG else ARG["ws"]}')
    P('s_waitcnt lgkmcnt(0)')
    for n, s in lst:
        if n in WS:
            P(f's_add_u32 s{s}, s{s}, {WS[n][0]}\ns_addc_u32 s{s+1}, s{s+1}, 0')
        P(f's_mov_b32 s{s+2}, {SIZE[n] if n in SIZE else WS[n][1]}\ns_mov_b32 s{s+3}, 0x20000')
def guard(n):
    P(f's_cmp_ge_u32 s2, {n}')
    L = P.label('go')
    P(f's_cbranch_scc0 {L}\ns_endpgm\n{L}:')
def rbf(v):
    P(f'v_cvt_pk_bf16_f32 v{v}, v{v}, v{v}\nv_lshlrev_b32 v{v}, 16, v{v}')
def wsum(v, t):
    P(f'v_add_f32 v{v}, v{v}, v{v} quad_perm:[1,0,3,2] row_mask:0xf bank_mask:0xf'.replace('v_add_f32', 'v_add_f32_dpp'))
    P(f'v_add_f32_dpp v{v}, v{v}, v{v} quad_perm:[2,3,0,1] row_mask:0xf bank_mask:0xf')
    P(f'v_add_f32_dpp v{v}, v{v}, v{v} row_half_mirror row_mask:0xf bank_mask:0xf')
    P(f'v_add_f32_dpp v{v}, v{v}, v{v} row_mirror row_mask:0xf bank_mask:0xf')
    P(f'v_mov_b32 v{t}, v{v}\nv_permlane16_swap_b32 v{t}, v{v}\nv_add_f32 v{v}, v{v}, v{t}')
    P(f'v_mov_b32 v{t}, v{v}\nv_permlane32_swap_b32 v{t}, v{v}\nv_add_f32 v{v}, v{v}, v{t}')

P.begin('mod_kernel'); guard(15)
srds([('c', 4), ('wm', 8), ('mod', 12)])
for r in range(3):
    P(f'''v_add_u32 v1, {256*r}, v0
    v_lshlrev_b32 v2, 1, v1
    buffer_load_ushort v3, v2, s[4:7], 0 offen
    s_waitcnt vmcnt(0)
    v_lshlrev_b32 v3, 16, v3
    v_mul_f32 v4, 0xbfb8aa3b, v3
    v_exp_f32 v4, v4
    v_add_f32 v4, 1.0, v4
    v_rcp_f32 v4, v4
    v_mul_f32 v3, v3, v4''')
    rbf(3)
    P('v_lshlrev_b32 v2, 2, v1\nds_write_b32 v2, v3')
P('''s_waitcnt lgkmcnt(0)
s_barrier
s_lshl_b32 s16, s2, 8
v_add_u32 v1, s16, v0
v_lshlrev_b32 v2, 1, v1
v_mov_b32 v10, 0
v_mov_b32 v11, 0
s_mov_b32 s17, 0
s_mov_b32 s18, 0
mod_loop:''')
for j in range(8):
    P(f'buffer_load_ushort v{12+j}, v2, s[8:11], s18 offen\ns_add_u32 s18, s18, 7680')
P('ds_read_b128 v[20:23], v11\nds_read_b128 v[24:27], v11 offset:16\nv_add_u32 v11, 32, v11\ns_waitcnt vmcnt(0) lgkmcnt(0)')
for j in range(8):
    P(f'v_lshlrev_b32 v{12+j}, 16, v{12+j}\nv_fmac_f32 v10, v{12+j}, v{20+j}')
P('s_add_u32 s17, s17, 8\ns_cmp_lt_u32 s17, 640\ns_cbranch_scc1 mod_loop')
rbf(10)
P('v_lshlrev_b32 v2, 2, v1\nbuffer_store_dword v10, v2, s[12:15], 0 offen\ns_endpgm')
P.end('mod_kernel', 15, 256, 4096)

def ln(name, src, dst, ishift, iscale):
    P.begin(name); guard(512)
    srds([(src, 4), (dst, 8), ('mod', 12)])
    P(f'''v_lshrrev_b32 v1, 6, v0
    s_lshl_b32 s16, s2, 2
    v_add_u32 v1, s16, v1
    v_mul_u32_u24 v1, 1280, v1
    v_and_b32 v2, 63, v0
    v_lshl_add_u32 v1, v2, 2, v1
    v_lshlrev_b32 v2, 3, v2''')
    for j in range(5):
        P(f'buffer_load_dword v{10+j}, v1, s[4:7], 0 offen offset:{256*j}')
    P(f's_mov_b32 s16, {ishift*2560}\ns_mov_b32 s17, {iscale*2560}')
    for j in range(5):
        P(f'buffer_load_dwordx2 v[{30+2*j}:{31+2*j}], v2, s[12:15], s16 offen offset:{512*j}')
        P(f'buffer_load_dwordx2 v[{40+2*j}:{41+2*j}], v2, s[12:15], s17 offen offset:{512*j}')
    P('s_waitcnt vmcnt(0)\nv_mov_b32 v3, 0')
    for j in range(5):
        P(f'v_lshlrev_b32 v{20+2*j}, 16, v{10+j}\nv_and_b32 v{21+2*j}, 0xffff0000, v{10+j}')
    for j in range(10): P(f'v_add_f32 v3, v3, v{20+j}')
    wsum(3, 4)
    P('v_mul_f32 v3, 0x3acccccd, v3\nv_mov_b32 v5, 0')
    for j in range(10): P(f'v_sub_f32 v6, v{20+j}, v3\nv_fmac_f32 v5, v6, v6')
    wsum(5, 4)
    P('v_mul_f32 v5, 0x3acccccd, v5')
    rbf(3); rbf(5)
    P('v_add_f32 v5, 0x3727c5ac, v5'); rbf(5)
    P('v_sqrt_f32 v5, v5'); rbf(5)
    P('v_rcp_f32 v5, v5')
    for j in range(10):
        v = 20 + j
        P(f'v_sub_f32 v{v}, v{v}, v3'); rbf(v)
        P(f'v_mul_f32 v{v}, v{v}, v5'); rbf(v)
        P(f'v_add_f32 v{40+j}, 1.0, v{40+j}'); rbf(40+j)
        P(f'v_mul_f32 v{v}, v{v}, v{40+j}'); rbf(v)
        P(f'v_add_f32 v{v}, v{v}, v{30+j}')
    for j in range(5):
        P(f'v_cvt_pk_bf16_f32 v{10+j}, v{20+2*j}, v{21+2*j}\nbuffer_store_dword v{10+j}, v1, s[8:11], 0 offen offset:{256*j}')
    P('s_endpgm')
    P.end(name, 512, 256, 0)
ln('ln1_kernel', 'u', 'h', 0, 1)

P.begin('kgen_kernel'); guard(5120)
srds([('lar', 4), ('aim', 8), ('cr', 12), ('ci', 16), ('ldt', 20), ('K', 24)])
P('''s_lshr_b32 s28, s2, 3
s_and_b32 s29, s2, 7
s_lshl_b32 s30, s28, 8
v_and_b32 v1, 127, v0
v_lshlrev_b32 v2, 1, v1
s_lshl_b32 s31, s28, 1
v_mov_b32 v3, s31
buffer_load_ushort v4, v2, s[4:7], s30 offen
buffer_load_ushort v5, v2, s[8:11], s30 offen
buffer_load_ushort v6, v2, s[12:15], s30 offen
buffer_load_ushort v7, v2, s[16:19], s30 offen
buffer_load_ushort v8, v3, s[20:23], 0 offen
s_waitcnt vmcnt(0)''')
for j in range(4, 9): P(f'v_lshlrev_b32 v{j}, 16, v{j}')
P('v_mul_f32 v4, 0x3fb8aa3b, v4\nv_exp_f32 v4, v4\nv_mul_f32 v8, 0x3fb8aa3b, v8\nv_exp_f32 v8, v8')
rbf(4); rbf(8)
P('''v_mul_f32 v4, v4, v8
v_mul_f32 v5, v5, v8
v_mul_f32 v6, v6, v8
v_mul_f32 v7, v7, v8
v_mul_f32 v4, 0xbfb8aa3b, v4
v_mul_f32 v5, 0.15915494, v5
v_lshlrev_b32 v2, 4, v1
ds_write_b128 v2, v[4:7]
s_waitcnt lgkmcnt(0)
s_barrier
s_lshl_b32 s30, s29, 8
v_add_u32 v1, s30, v0
v_cvt_f32_u32 v2, v1''')
rbf(2)
P('''v_mov_b32 v3, 0
v_mov_b32 v9, 0
s_mov_b32 s30, 0
kgen_loop:
ds_read_b128 v[4:7], v9
v_add_u32 v9, 16, v9
s_waitcnt lgkmcnt(0)
v_mul_f32 v4, v4, v2
v_mul_f32 v5, v5, v2
v_exp_f32 v4, v4
v_fract_f32 v5, v5
v_cos_f32 v10, v5
v_sin_f32 v11, v5
v_mul_f32 v10, v10, v6
v_fma_f32 v10, -v11, v7, v10
v_fmac_f32 v3, v10, v4
s_add_u32 s30, s30, 1
s_cmp_lt_u32 s30, 128
s_cbranch_scc1 kgen_loop
v_add_f32 v3, v3, v3
v_mul_u32_u24 v1, 2560, v1
s_lshl_b32 s31, s28, 2
buffer_store_dword v3, v1, s[24:27], s31 offen
s_endpgm''')
P.end('kgen_kernel', 5120, 256, 2048)

P.begin('conv_kernel'); guard(10240)
srds([('K', 4), ('h', 8), ('u', 12), ('x1', 16), ('mod', 20), ('dsk', 24)])
P('''s_mul_hi_u32 s28, s2, 0x33333334
s_mul_i32 s29, s28, 5
s_sub_u32 s29, s2, s29
s_lshl_b32 s29, s29, 7
v_add_u32 v1, s29, v0
v_lshlrev_b32 v2, 2, v1
v_lshlrev_b32 v3, 1, v1
s_mul_i32 s30, s28, 1280
v_add_u32 v4, s30, v3
v_mov_b32 v5, v4
v_mov_b32 v6, 0
s_mov_b32 s31, 0
s_mov_b32 s32, 0
conv_loop:''')
for j in range(8):
    P(f'buffer_load_dword v{10+j}, v2, s[4:7], s32 offen\nbuffer_load_ushort v{20+j}, v5, s[8:11], 0 offen\nv_subrev_u32 v5, 1280, v5\ns_add_u32 s32, s32, 2560')
P('s_waitcnt vmcnt(0)')
for j in range(8):
    P(f'v_lshlrev_b32 v{20+j}, 16, v{20+j}\nv_fmac_f32 v6, v{10+j}, v{20+j}')
P('''s_add_u32 s31, s31, 8
s_cmp_le_u32 s31, s28
s_cbranch_scc1 conv_loop
s_mov_b32 s33, 5120
buffer_load_ushort v10, v4, s[8:11], 0 offen
buffer_load_ushort v11, v4, s[12:15], 0 offen
buffer_load_dword v12, v2, s[20:23], s33 offen
buffer_load_ushort v13, v3, s[24:27], 0 offen
s_waitcnt vmcnt(0)
v_lshlrev_b32 v10, 16, v10
v_lshlrev_b32 v11, 16, v11
v_lshlrev_b32 v13, 16, v13
v_mul_f32 v10, v10, v13''')
rbf(10); rbf(6)
P('v_add_f32 v6, v6, v10'); rbf(6)
P('v_mul_f32 v6, v6, v12'); rbf(6)
P('v_add_f32 v6, v6, v11\nv_cvt_pk_bf16_f32 v6, v6, v6\nbuffer_store_short v6, v4, s[16:19], 0 offen\ns_endpgm')
P.end('conv_kernel', 10240, 128, 0)

ln('ln2_kernel', 'x1', 'h2', 3, 4)

P.begin('g1_kernel'); guard(128*27)
srds([('h2', 4), ('wg', 8), ('wu', 12), ('z', 16)])
P('''s_mul_hi_u32 s28, s2, 0x97b425f
s_mul_i32 s29, s28, 27
s_sub_u32 s29, s2, s29
v_lshrrev_b32 v1, 6, v0
v_and_b32 v2, 15, v0
v_bfe_u32 v3, v0, 4, 2
s_lshl_b32 s30, s28, 4
v_add_u32 v4, s30, v2
v_mul_u32_u24 v4, 1280, v4
v_lshl_add_u32 v4, v3, 4, v4
s_lshl_b32 s31, s29, 6
v_lshl_add_u32 v5, v1, 4, v2
v_add_u32 v5, s31, v5
v_mul_u32_u24 v6, 27648, v3
v_lshl_add_u32 v6, v5, 1, v6
s_mov_b32 s32, 0
s_mov_b32 s33, 0''')
for j in range(8): P(f'v_mov_b32 v{40+j}, 0')
P('g1_loop:\nbuffer_load_dwordx4 v[8:11], v4, s[4:7], s32 offen')
for j in range(8):
    P(f'buffer_load_ushort v{12+j}, v6, s[8:11], s33 offen\nbuffer_load_ushort v{20+j}, v6, s[12:15], s33 offen\ns_add_u32 s33, s33, 3456')
P(f's_add_u32 s33, s33, {24*3456}\ns_waitcnt vmcnt(0)')
for j in range(4):
    P(f'v_lshl_or_b32 v{28+j}, v{13+2*j}, 16, v{12+2*j}\nv_lshl_or_b32 v{32+j}, v{21+2*j}, 16, v{20+2*j}')
P('''v_mfma_f32_16x16x32_bf16 v[40:43], v[8:11], v[28:31], v[40:43]
v_mfma_f32_16x16x32_bf16 v[44:47], v[8:11], v[32:35], v[44:47]
s_add_u32 s32, s32, 64
s_cmp_lt_u32 s32, 1280
s_cbranch_scc1 g1_loop
v_lshlrev_b32 v7, 2, v3
v_add_u32 v7, s30, v7
v_mul_u32_u24 v7, 3456, v7
v_lshl_add_u32 v7, v5, 1, v7''')
for j in range(4):
    g, u = 40+j, 44+j
    rbf(g); rbf(u)
    P(f'''v_mul_f32 v8, v{g}, v{g}
    v_mul_f32 v8, 0x3d372713, v8
    v_add_f32 v8, 1.0, v8
    v_mul_f32 v8, v8, v{g}
    v_mul_f32 v8, 0xc0135761, v8
    v_exp_f32 v8, v8
    v_add_f32 v8, 1.0, v8
    v_rcp_f32 v8, v8
    v_mul_f32 v{g}, v{g}, v8''')
    rbf(g)
    P(f'v_mul_f32 v{g}, v{g}, v{u}\nv_cvt_pk_bf16_f32 v{g}, v{g}, v{g}\nbuffer_store_short v{g}, v7, s[16:19], 0 offen\nv_add_u32 v7, 3456, v7')
P('s_endpgm')
P.end('g1_kernel', 128*27, 256, 0)

P.begin('g2_kernel'); guard(128*10)
srds([('z', 4), ('wd', 8), ('x1', 12), ('out', 16), ('mod', 20)])
P('''s_mul_hi_u32 s28, s2, 0x1999999a
s_mul_i32 s29, s28, 10
s_sub_u32 s29, s2, s29
v_lshrrev_b32 v1, 6, v0
v_and_b32 v2, 15, v0
v_bfe_u32 v3, v0, 4, 2
s_lshl_b32 s30, s28, 4
v_add_u32 v4, s30, v2
v_mul_u32_u24 v4, 3456, v4
v_lshl_add_u32 v4, v3, 4, v4
s_lshl_b32 s31, s29, 6
v_lshl_add_u32 v5, v1, 4, v2
v_add_u32 v5, s31, v5
v_mul_u32_u24 v6, 10240, v3
v_lshl_add_u32 v6, v5, 1, v6
s_mov_b32 s32, 0
s_mov_b32 s33, 0''')
for j in range(4): P(f'v_mov_b32 v{40+j}, 0')
P('g2_loop:\nbuffer_load_dwordx4 v[8:11], v4, s[4:7], s32 offen')
for j in range(8):
    P(f'buffer_load_ushort v{12+j}, v6, s[8:11], s33 offen\ns_add_u32 s33, s33, 1280')
P(f's_add_u32 s33, s33, {24*1280}\ns_waitcnt vmcnt(0)')
for j in range(4):
    P(f'v_lshl_or_b32 v{28+j}, v{13+2*j}, 16, v{12+2*j}')
P('''v_mfma_f32_16x16x32_bf16 v[40:43], v[8:11], v[28:31], v[40:43]
s_add_u32 s32, s32, 64
s_cmp_lt_u32 s32, 3456
s_cbranch_scc1 g2_loop
v_lshlrev_b32 v7, 2, v3
v_add_u32 v7, s30, v7
v_mul_u32_u24 v7, 1280, v7
v_lshl_add_u32 v7, v5, 1, v7
v_lshlrev_b32 v8, 2, v5
s_mov_b32 s33, 12800
buffer_load_dword v9, v8, s[20:23], s33 offen''')
for j in range(4):
    P(f'buffer_load_ushort v{12+j}, v7, s[12:15], 0 offen offset:{1280*j}')
P('s_waitcnt vmcnt(0)')
for j in range(4):
    g = 40+j
    rbf(g)
    P(f'v_mul_f32 v{g}, v{g}, v9'); rbf(g)
    P(f'v_lshlrev_b32 v{12+j}, 16, v{12+j}\nv_add_f32 v{g}, v{g}, v{12+j}')
    if len(sys.argv) > 3: P(f'v_mul_f32 v{g}, {sys.argv[3]}, v{g}')
    P(f'v_cvt_pk_bf16_f32 v{g}, v{g}, v{g}\nbuffer_store_short v{g}, v7, s[16:19], 0 offen offset:{1280*j}')
P('s_endpgm')
P.end('g2_kernel', 128*10, 256, 0)

P.begin('nop_kernel'); P('s_endpgm'); P.end('nop_kernel', 256, 256, 0, launch=False)
seq = [k['name'] for k in P.kernels if k['launch']] + ['nop_kernel'] * int(sys.argv[2])
open(sys.argv[1], 'w').write(P.text(HDR, seq))
```

```python
import sys
from asmlib import *
NAME = 'adaLN_cond__ssm_conv_s4d__geglu_ffn__prompt'
HDR = ''.join(l for l in open(f'cdna_kernels/{NAME}.s.ref') if l.startswith(';') and '@launch' not in l and 'Override' not in l and 'grid=ceil' not in l)
ARG = dict(u=0, lar=8, aim=16, cr=24, ci=32, ldt=40, dsk=48, bx=56, wg=64, wu=72, wd=80, c=88, wm=96, out=104, dbg=112, ws=120)
SIZE = dict(u=2621440, lar=163840, aim=163840, cr=163840, ci=163840, ldt=1280, dsk=1280, wg=2211840, wu=2211840, wd=2211840, c=1280, wm=4915200, out=2621440, dbg=256)
WS = dict(mod=(0, 15360), h=(1<<20, 2621440), K=(4<<20, 2048*640*4), x1=(10<<20, 2621440), h2=(13<<20, 2621440), z=(16<<20, 2048*1728*2))
P = Prog()
def srds(lst):
    for n, s in lst:
        P(f's_load_dwordx2 {sr(s,2)}, s[0:1], {ARG[n] if n in ARG else ARG["ws"]}')
    P('s_waitcnt lgkmcnt(0)')
    for n, s in lst:
        if n in WS:
            P(f's_add_u32 s{s}, s{s}, {WS[n][0]}\ns_addc_u32 s{s+1}, s{s+1}, 0')
        P(f's_mov_b32 s{s+2}, {SIZE[n] if n in SIZE else WS[n][1]}\ns_mov_b32 s{s+3}, 0x20000')
def guard(n):
    P(f's_cmp_ge_u32 s2, {n}')
    L = P.label('go')
    P(f's_cbranch_scc0 {L}\ns_endpgm\n{L}:')
def rbf(v):
    P(f'v_cvt_pk_bf16_f32 v{v}, v{v}, v{v}\nv_lshlrev_b32 v{v}, 16, v{v}')
def wsum(v, t):
    P(f'v_add_f32 v{v}, v{v}, v{v} quad_perm:[1,0,3,2] row_mask:0xf bank_mask:0xf'.replace('v_add_f32', 'v_add_f32_dpp'))
    P(f'v_add_f32_dpp v{v}, v{v}, v{v} quad_perm:[2,3,0,1] row_mask:0xf bank_mask:0xf')
    P(f'v_add_f32_dpp v{v}, v{v}, v{v} row_half_mirror row_mask:0xf bank_mask:0xf')
    P(f'v_add_f32_dpp v{v}, v{v}, v{v} row_mirror row_mask:0xf bank_mask:0xf')
    P(f'v_mov_b32 v{t}, v{v}\nv_permlane16_swap_b32 v{t}, v{v}\nv_add_f32 v{v}, v{v}, v{t}')
    P(f'v_mov_b32 v{t}, v{v}\nv_permlane32_swap_b32 v{t}, v{v}\nv_add_f32 v{v}, v{v}, v{t}')

P.begin('mod_kernel'); guard(15)
srds([('c', 4), ('wm', 8), ('mod', 12)])
for r in range(3):
    P(f'''v_add_u32 v1, {256*r}, v0
    v_lshlrev_b32 v2, 1, v1
    buffer_load_ushort v3, v2, s[4:7], 0 offen
    s_waitcnt vmcnt(0)
    v_lshlrev_b32 v3, 16, v3
    v_mul_f32 v4, 0xbfb8aa3b, v3
    v_exp_f32 v4, v4
    v_add_f32 v4, 1.0, v4
    v_rcp_f32 v4, v4
    v_mul_f32 v3, v3, v4''')
    rbf(3)
    P('v_lshlrev_b32 v2, 2, v1\nds_write_b32 v2, v3')
P('''s_waitcnt lgkmcnt(0)
s_barrier
s_lshl_b32 s16, s2, 8
v_add_u32 v1, s16, v0
v_lshlrev_b32 v2, 1, v1
v_mov_b32 v10, 0
v_mov_b32 v11, 0
s_mov_b32 s17, 0
s_mov_b32 s18, 0
mod_loop:''')
for j in range(8):
    P(f'buffer_load_ushort v{12+j}, v2, s[8:11], s18 offen\ns_add_u32 s18, s18, 7680')
P('ds_read_b128 v[20:23], v11\nds_read_b128 v[24:27], v11 offset:16\nv_add_u32 v11, 32, v11\ns_waitcnt vmcnt(0) lgkmcnt(0)')
for j in range(8):
    P(f'v_lshlrev_b32 v{12+j}, 16, v{12+j}\nv_fmac_f32 v10, v{12+j}, v{20+j}')
P('s_add_u32 s17, s17, 8\ns_cmp_lt_u32 s17, 640\ns_cbranch_scc1 mod_loop')
rbf(10)
P('v_lshlrev_b32 v2, 2, v1\nbuffer_store_dword v10, v2, s[12:15], 0 offen\ns_endpgm')
P.end('mod_kernel', 15, 256, 4096)

def ln(name, src, dst, ishift, iscale):
    P.begin(name); guard(512)
    srds([(src, 4), (dst, 8), ('mod', 12)])
    P(f'''v_lshrrev_b32 v1, 6, v0
    s_lshl_b32 s16, s2, 2
    v_add_u32 v1, s16, v1
    v_mul_u32_u24 v1, 1280, v1
    v_and_b32 v2, 63, v0
    v_lshl_add_u32 v1, v2, 2, v1
    v_lshlrev_b32 v2, 3, v2''')
    for j in range(5):
        P(f'buffer_load_dword v{10+j}, v1, s[4:7], 0 offen offset:{256*j}')
    P(f's_mov_b32 s16, {ishift*2560}\ns_mov_b32 s17, {iscale*2560}')
    for j in range(5):
        P(f'buffer_load_dwordx2 v[{30+2*j}:{31+2*j}], v2, s[12:15], s16 offen offset:{512*j}')
        P(f'buffer_load_dwordx2 v[{40+2*j}:{41+2*j}], v2, s[12:15], s17 offen offset:{512*j}')
    P('s_waitcnt vmcnt(0)\nv_mov_b32 v3, 0')
    for j in range(5):
        P(f'v_lshlrev_b32 v{20+2*j}, 16, v{10+j}\nv_and_b32 v{21+2*j}, 0xffff0000, v{10+j}')
    for j in range(10): P(f'v_add_f32 v3, v3, v{20+j}')
    wsum(3, 4)
    P('v_mul_f32 v3, 0x3acccccd, v3\nv_mov_b32 v5, 0')
    for j in range(10): P(f'v_sub_f32 v6, v{20+j}, v3\nv_fmac_f32 v5, v6, v6')
    wsum(5, 4)
    P('v_mul_f32 v5, 0x3acccccd, v5')
    rbf(3); rbf(5)
    P('v_add_f32 v5, 0x3727c5ac, v5'); rbf(5)
    P('v_sqrt_f32 v5, v5'); rbf(5)
    P('v_rcp_f32 v5, v5')
    for j in range(10):
        v = 20 + j
        P(f'v_sub_f32 v{v}, v{v}, v3'); rbf(v)
        P(f'v_mul_f32 v{v}, v{v}, v5'); rbf(v)
        P(f'v_add_f32 v{40+j}, 1.0, v{40+j}'); rbf(40+j)
        P(f'v_mul_f32 v{v}, v{v}, v{40+j}'); rbf(v)
        P(f'v_add_f32 v{v}, v{v}, v{30+j}')
    for j in range(5):
        P(f'v_cvt_pk_bf16_f32 v{10+j}, v{20+2*j}, v{21+2*j}\nbuffer_store_dword v{10+j}, v1, s[8:11], 0 offen offset:{256*j}')
    P('s_endpgm')
    P.end(name, 512, 256, 0)
ln('ln1_kernel', 'u', 'h', 0, 1)

P.begin('kgen_kernel'); guard(5120)
srds([('lar', 4), ('aim', 8), ('cr', 12), ('ci', 16), ('ldt', 20), ('K', 24)])
P('''s_lshr_b32 s28, s2, 3
s_and_b32 s29, s2, 7
s_lshl_b32 s30, s28, 8
v_and_b32 v1, 127, v0
v_lshlrev_b32 v2, 1, v1
s_lshl_b32 s31, s28, 1
v_mov_b32 v3, s31
buffer_load_ushort v4, v2, s[4:7], s30 offen
buffer_load_ushort v5, v2, s[8:11], s30 offen
buffer_load_ushort v6, v2, s[12:15], s30 offen
buffer_load_ushort v7, v2, s[16:19], s30 offen
buffer_load_ushort v8, v3, s[20:23], 0 offen
s_waitcnt vmcnt(0)''')
for j in range(4, 9): P(f'v_lshlrev_b32 v{j}, 16, v{j}')
P('v_mul_f32 v4, 0x3fb8aa3b, v4\nv_exp_f32 v4, v4\nv_mul_f32 v8, 0x3fb8aa3b, v8\nv_exp_f32 v8, v8')
rbf(4); rbf(8)
P('''v_mul_f32 v4, v4, v8
v_mul_f32 v5, v5, v8
v_mul_f32 v6, v6, v8
v_mul_f32 v7, v7, v8
v_mul_f32 v4, 0xbfb8aa3b, v4
v_mul_f32 v5, 0.15915494, v5
v_lshlrev_b32 v2, 4, v1
ds_write_b128 v2, v[4:7]
s_waitcnt lgkmcnt(0)
s_barrier
s_lshl_b32 s30, s29, 8
v_add_u32 v1, s30, v0
v_cvt_f32_u32 v2, v1''')
rbf(2)
P('''v_mov_b32 v3, 0
v_mov_b32 v9, 0
s_mov_b32 s30, 0
kgen_loop:
ds_read_b128 v[4:7], v9
v_add_u32 v9, 16, v9
s_waitcnt lgkmcnt(0)
v_mul_f32 v4, v4, v2
v_mul_f32 v5, v5, v2
v_exp_f32 v4, v4
v_fract_f32 v5, v5
v_cos_f32 v10, v5
v_sin_f32 v11, v5
v_mul_f32 v10, v10, v6
v_fma_f32 v10, -v11, v7, v10
v_fmac_f32 v3, v10, v4
s_add_u32 s30, s30, 1
s_cmp_lt_u32 s30, 128
s_cbranch_scc1 kgen_loop
v_add_f32 v3, v3, v3
v_mul_u32_u24 v1, 2560, v1
s_lshl_b32 s31, s28, 2
buffer_store_dword v3, v1, s[24:27], s31 offen
s_endpgm''')
P.end('kgen_kernel', 5120, 256, 2048)

P.begin('conv_kernel'); guard(10240)
srds([('K', 4), ('h', 8), ('u', 12), ('x1', 16), ('mod', 20), ('dsk', 24)])
P('''s_mul_hi_u32 s28, s2, 0x33333334
s_mul_i32 s29, s28, 5
s_sub_u32 s29, s2, s29
s_lshl_b32 s29, s29, 7
v_add_u32 v1, s29, v0
v_lshlrev_b32 v2, 2, v1
v_lshlrev_b32 v3, 1, v1
s_mul_i32 s30, s28, 1280
v_add_u32 v4, s30, v3
v_mov_b32 v5, v4
v_mov_b32 v6, 0
s_mov_b32 s31, 0
s_mov_b32 s32, 0
conv_loop:''')
for j in range(8):
    P(f'buffer_load_dword v{10+j}, v2, s[4:7], s32 offen\nbuffer_load_ushort v{20+j}, v5, s[8:11], 0 offen\nv_subrev_u32 v5, 1280, v5\ns_add_u32 s32, s32, 2560')
P('s_waitcnt vmcnt(0)')
for j in range(8):
    P(f'v_lshlrev_b32 v{20+j}, 16, v{20+j}\nv_fmac_f32 v6, v{10+j}, v{20+j}')
P('''s_add_u32 s31, s31, 8
s_cmp_le_u32 s31, s28
s_cbranch_scc1 conv_loop
s_mov_b32 s33, 5120
buffer_load_ushort v10, v4, s[8:11], 0 offen
buffer_load_ushort v11, v4, s[12:15], 0 offen
buffer_load_dword v12, v2, s[20:23], s33 offen
buffer_load_ushort v13, v3, s[24:27], 0 offen
s_waitcnt vmcnt(0)
v_lshlrev_b32 v10, 16, v10
v_lshlrev_b32 v11, 16, v11
v_lshlrev_b32 v13, 16, v13
v_mul_f32 v10, v10, v13''')
rbf(10); rbf(6)
P('v_add_f32 v6, v6, v10'); rbf(6)
P('v_mul_f32 v6, v6, v12'); rbf(6)
P('v_add_f32 v6, v6, v11\nv_cvt_pk_bf16_f32 v6, v6, v6\nbuffer_store_short v6, v4, s[16:19], 0 offen\ns_endpgm')
P.end('conv_kernel', 10240, 128, 0)

ln('ln2_kernel', 'x1', 'h2', 3, 4)

P.begin('g1_kernel'); guard(128*27)
srds([('h2', 4), ('wg', 8), ('wu', 12), ('z', 16)])
P('''s_mul_hi_u32 s28, s2, 0x97b425f
s_mul_i32 s29, s28, 27
s_sub_u32 s29, s2, s29
v_lshrrev_b32 v1, 6, v0
v_and_b32 v2, 15, v0
v_bfe_u32 v3, v0, 4, 2
s_lshl_b32 s30, s28, 4
v_add_u32 v4, s30, v2
v_mul_u32_u24 v4, 1280, v4
v_lshl_add_u32 v4, v3, 4, v4
s_lshl_b32 s31, s29, 6
v_lshl_add_u32 v5, v1, 4, v2
v_add_u32 v5, s31, v5
v_mul_u32_u24 v6, 27648, v3
v_lshl_add_u32 v6, v5, 1, v6
s_mov_b32 s32, 0
s_mov_b32 s33, 0''')
for j in range(8): P(f'v_mov_b32 v{40+j}, 0')
P('g1_loop:\nbuffer_load_dwordx4 v[8:11], v4, s[4:7], s32 offen')
for j in range(8):
    P(f'buffer_load_ushort v{12+j}, v6, s[8:11], s33 offen\nbuffer_load_ushort v{20+j}, v6, s[12:15], s33 offen\ns_add_u32 s33, s33, 3456')
P(f's_add_u32 s33, s33, {24*3456}\ns_waitcnt vmcnt(0)')
for j in range(4):
    P(f'v_lshl_or_b32 v{28+j}, v{13+2*j}, 16, v{12+2*j}\nv_lshl_or_b32 v{32+j}, v{21+2*j}, 16, v{20+2*j}')
P('''v_mfma_f32_16x16x32_bf16 v[40:43], v[8:11], v[28:31], v[40:43]
v_mfma_f32_16x16x32_bf16 v[44:47], v[8:11], v[32:35], v[44:47]
s_add_u32 s32, s32, 64
s_cmp_lt_u32 s32, 1280
s_cbranch_scc1 g1_loop
v_lshlrev_b32 v7, 2, v3
v_add_u32 v7, s30, v7
v_mul_u32_u24 v7, 3456, v7
v_lshl_add_u32 v7, v5, 1, v7''')
for j in range(4):
    g, u = 40+j, 44+j
    rbf(g); rbf(u)
    P(f'''v_mul_f32 v8, v{g}, v{g}
    v_mul_f32 v8, 0x3d372713, v8
    v_add_f32 v8, 1.0, v8
    v_mul_f32 v8, v8, v{g}
    v_mul_f32 v8, 0xc0135761, v8
    v_exp_f32 v8, v8
    v_add_f32 v8, 1.0, v8
    v_rcp_f32 v8, v8
    v_mul_f32 v{g}, v{g}, v8''')
    rbf(g)
    P(f'v_mul_f32 v{g}, v{g}, v{u}\nv_cvt_pk_bf16_f32 v{g}, v{g}, v{g}\nbuffer_store_short v{g}, v7, s[16:19], 0 offen\nv_add_u32 v7, 3456, v7')
P('s_endpgm')
P.end('g1_kernel', 128*27, 256, 0)

P.begin('g2_kernel'); guard(128*10)
srds([('z', 4), ('wd', 8), ('x1', 12), ('out', 16), ('mod', 20)])
P('''s_mul_hi_u32 s28, s2, 0x1999999a
s_mul_i32 s29, s28, 10
s_sub_u32 s29, s2, s29
v_lshrrev_b32 v1, 6, v0
v_and_b32 v2, 15, v0
v_bfe_u32 v3, v0, 4, 2
s_lshl_b32 s30, s28, 4
v_add_u32 v4, s30, v2
v_mul_u32_u24 v4, 3456, v4
v_lshl_add_u32 v4, v3, 4, v4
s_lshl_b32 s31, s29, 6
v_lshl_add_u32 v5, v1, 4, v2
v_add_u32 v5, s31, v5
v_mul_u32_u24 v6, 10240, v3
v_lshl_add_u32 v6, v5, 1, v6
s_mov_b32 s32, 0
s_mov_b32 s33, 0''')
for j in range(4): P(f'v_mov_b32 v{40+j}, 0')
P('g2_loop:\nbuffer_load_dwordx4 v[8:11], v4, s[4:7], s32 offen')
for j in range(8):
    P(f'buffer_load_ushort v{12+j}, v6, s[8:11], s33 offen\ns_add_u32 s33, s33, 1280')
P(f's_add_u32 s33, s33, {24*1280}\ns_waitcnt vmcnt(0)')
for j in range(4):
    P(f'v_lshl_or_b32 v{28+j}, v{13+2*j}, 16, v{12+2*j}')
P('''v_mfma_f32_16x16x32_bf16 v[40:43], v[8:11], v[28:31], v[40:43]
s_add_u32 s32, s32, 64
s_cmp_lt_u32 s32, 3456
s_cbranch_scc1 g2_loop
v_lshlrev_b32 v7, 2, v3
v_add_u32 v7, s30, v7
v_mul_u32_u24 v7, 1280, v7
v_lshl_add_u32 v7, v5, 1, v7
v_lshlrev_b32 v8, 2, v5
s_mov_b32 s33, 12800
buffer_load_dword v9, v8, s[20:23], s33 offen''')
for j in range(4):
    P(f'buffer_load_ushort v{12+j}, v7, s[12:15], 0 offen offset:{1280*j}')
P('s_waitcnt vmcnt(0)')
for j in range(4):
    g = 40+j
    rbf(g)
    P(f'v_mul_f32 v{g}, v{g}, v9'); rbf(g)
    P(f'v_lshlrev_b32 v{12+j}, 16, v{12+j}\nv_add_f32 v{g}, v{g}, v{12+j}')
    if len(sys.argv) > 3: P(f'v_mul_f32 v{g}, {sys.argv[3]}, v{g}')
    P(f'v_cvt_pk_bf16_f32 v{g}, v{g}, v{g}\nbuffer_store_short v{g}, v7, s[16:19], 0 offen offset:{1280*j}')
P('s_endpgm')
P.end('g2_kernel', 128*10, 256, 0)


def chase(name, arg, nbytes):
    P.begin(name); guard(1)
    srds([(arg, 4)])
    step = (nbytes // 2000) // 128 * 128
    P(f"""v_mov_b32 v1, 0
    s_mov_b32 s10, 0
    {name}_l:
    buffer_load_dword v2, v1, s[4:7], 0 offen
    s_waitcnt vmcnt(0)
    v_and_b32 v2, 0, v2
    v_add_u32 v1, {step}, v1
    v_add_u32 v1, v1, v2
    s_add_u32 s10, s10, 1
    s_cmp_lt_u32 s10, 2000
    s_cbranch_scc1 {name}_l
    s_endpgm""")
    P.end(name, 1, 64, 0, launch=False)
chase('chu_kernel', 'u', 2621440)
chase('chg_kernel', 'wg', 2211840)
chase('chm_kernel', 'wm', 4915200)
chase('cho_kernel', 'out', 2621440)
chase('chz_kernel', 'z', 7000000)
P.begin('nop_kernel'); P('s_endpgm'); P.end('nop_kernel', 256, 256, 0, launch=False)
seq = sys.argv[2].split(',') + [k['name'] for k in P.kernels if k['launch']]
open(sys.argv[1], 'w').write(P.text(HDR, seq))
```
